```python
import torch

def _softmax(x, axis=-1):
    return torch.softmax(x, dim=axis)
def _gelu(x):
    return torch.nn.functional.gelu(x, approximate="tanh")
def _silu(x):
    return torch.nn.functional.silu(x)
def _sigmoid(x):
    return torch.sigmoid(x)
def _layernorm(x, axis=-1, eps=1e-5):
    m = x.mean(dim=axis, keepdim=True)
    v = x.var(dim=axis, keepdim=True, unbiased=False)
    return (x - m) / torch.sqrt(v + eps)
def _scatter_add(tgt, idx, src, axis=0):
    return tgt.clone().index_add_(axis, idx, src)
def _segment_sum(src, seg, n):
    out = torch.zeros((n,) + src.shape[1:], dtype=src.dtype)
    return out.index_add_(0, seg, src)
def _pad(x, pw):
    flat = tuple(v for pair in reversed(pw) for v in pair)
    return torch.nn.functional.pad(x, flat)

kernel_name = 'recurrent_scan__gqa_block_cached__glu_gated_bilinear__decode'

def setup_inputs():

    _w = (lambda a: (lambda t: t.to(torch.bfloat16) if t.is_floating_point() else t)(torch.as_tensor(a)))
    def _A_setup():
        B, Sq, D = 8, 1, 448
        Hq, Hkv, Sk, Dh = 16, 8, 8192, 256
        assert Hq % Hkv == 0, (Hq, Hkv)
        return {
            "x": _w((lambda *s: torch.randn(*s, dtype=torch.bfloat16) * 0.4)(B, Sq, D)),
            "k_cache": _w((lambda *s: torch.randn(*s, dtype=torch.bfloat16) * 1.6)(B, Hkv, Sk, Dh)),
            "v_cache": _w((lambda *s: torch.randn(*s, dtype=torch.bfloat16) * 1.6)(B, Hkv, Sk, Dh)),
            "wq": _w((lambda *s: torch.randn(*s, dtype=torch.bfloat16) * 1.6)(D, Hq * Dh) * (D ** -0.5)),
            "wo": _w((lambda *s: torch.randn(*s, dtype=torch.bfloat16) * 1.6)(Hq * Dh, D) * ((Hq * Dh) ** -0.5)),
        }
    _A_in = _A_setup()

    def _B_setup():
        B, S, D, F = 8, 1, 448, 1792
        return {
            "x": _w((lambda *s: torch.randn(*s, dtype=torch.bfloat16) * 0.4)(B, S, D)),
            "w_gate": _w((lambda *s: torch.randn(*s, dtype=torch.bfloat16) * 1.6)(D, F) * (D ** -0.5)),
            "w_up": _w((lambda *s: torch.randn(*s, dtype=torch.bfloat16) * 1.6)(D, F) * (D ** -0.5)),
            "w_down": _w((lambda *s: torch.randn(*s, dtype=torch.bfloat16) * 1.6)(F, D) * (F ** -0.5)),
        }
    _B_in = _B_setup()

    return {
        "A_x": _A_in["x"],
        "A_k_cache": _A_in["k_cache"],
        "A_v_cache": _A_in["v_cache"],
        "A_wq": _A_in["wq"],
        "A_wo": _A_in["wo"],
        "B_x": _B_in["x"],
        "B_w_gate": _B_in["w_gate"],
        "B_w_up": _B_in["w_up"],
        "B_w_down": _B_in["w_down"],
    }

def reference(A_x, A_k_cache, A_v_cache, A_wq, A_wo, B_x, B_w_gate, B_w_up, B_w_down):
    def _A_ref(x, k_cache, v_cache, wq, wo):
        B, Sq, D = x.shape
        Hq, Dh = 16, 256
        Hkv = k_cache.shape[1]
        rep = Hq // Hkv
        q = (lambda x, *d: x.permute(*d))((x @ wq).reshape(B, Sq, Hq, Dh), 0, 2, 1, 3)
        k = (lambda x, n, axis: torch.repeat_interleave(x, n, dim=axis))(k_cache, rep, axis=1)
        v = (lambda x, n, axis: torch.repeat_interleave(x, n, dim=axis))(v_cache, rep, axis=1)
        scores = torch.einsum("bhqd,bhkd->bhqk", q, k) * (Dh ** -0.5)
        p = _softmax(scores, axis=-1)
        o = torch.einsum("bhqk,bhkd->bhqd", p, v)
        return (lambda x, *d: x.permute(*d))(o, 0, 2, 1, 3).reshape(B, Sq, Hq * Dh) @ wo

    def _B_ref(x, w_gate, w_up, w_down):
        g = torch.einsum("bsd,df->bsf", x, w_gate)
        u = torch.einsum("bsd,df->bsf", x, w_up)
        h = g * u
        return torch.einsum("bsf,fd->bsd", h, w_down)

    x = A_x
    xn = _layernorm(x, axis=-1)
    s = _A_ref(xn, A_k_cache, A_v_cache, A_wq, A_wo)
    g = _silu(_B_ref(xn, B_w_gate, B_w_up, B_w_down))
    return x + s * g
```

```python
import sys
KN='recurrent_scan__gqa_block_cached__glu_gated_bilinear__decode_kernel'
HDR=open('recurrent_scan__gqa_block_cached__glu_gated_bilinear__decode.s.ref').read().split('; Override launch')[0]
WQ_,WH_,WG_,WP_,WS_,WT_,WD_=0,0x10000,0x18000,0x20000,0x60000,0x70000,0x80000
WS_BYTES=0x100000
WQG=0x90000; WF2=0x74000; WE=0x78000
STG=131072; XN=147456; XNS=912; QL=XN+8*XNS; QS=528; FL=QL+1088; MS=FL+64; RED=MS+64; LDS=RED+2048
F_Q,F_GO,F_MC,F_MD,F_FC,F_XC,F_ST=FL,FL+4,FL+8,FL+12,FL+16,FL+20,FL+24
SK,SV,SX,SWQ,SWO,SWG,SWU,SWD,SOUT,SDBG,SWS=[f's[{a}:{a+3}]' for a in range(28,72,4)]
C_SC=0x3db8aa3b
LOG2E=0x3fb8aa3b

def gen(S=16, I=2, G=8192, wpol='', stamps=False, gmap=1, psleep=2, N=12, GR=4, prio=3, dbg='', opol=None, hpol=None, gsleep=64):
    opol=wpol if opol is None else opol; hpol=wpol if hpol is None else hpol
    L=[];
    def a(s):
        for x in s.split('\n'): L.append(x if x.endswith(':') else '    '+x)
    uid=[0]
    def lab(p):
        uid[0]+=1; return f'L_{p}{uid[0]}'
    def vr(b,n): return f'v[{b}:{b+n-1}]'
    TV=[250]
    def stamp(k):
        if not stamps: return
        tv=TV[0]
        a(f's_memrealtime s[98:99]\ns_waitcnt lgkmcnt(0)\nv_mov_b32 v{tv}, s98\nv_mov_b32 v{tv+1}, s97\ns_mov_b64 exec, 1\nbuffer_store_dword v{tv}, v{tv+1}, {SWS}, 0 offen offset:{k*4}\ns_mov_b64 exec, -1')
    def lds_spin(addr, vt, va, sleep=1, bound=1<<21):
        l=lab('sp'); d=lab('sd')
        a(f'v_mov_b32 v{va}, {addr}\ns_mov_b32 s96, 0\n{l}:\nds_read_b32 v{vt}, v{va}\ns_waitcnt lgkmcnt(0)\nv_readfirstlane_b32 s95, v{vt}\ns_cmp_lg_u32 s95, 0\ns_cbranch_scc1 {d}\ns_sleep {sleep}\ns_add_u32 s96, s96, 1\ns_cmp_lt_u32 s96, {bound}\ns_cbranch_scc1 {l}\n{d}:')
    def lds_set(addr, vt, va):
        a(f'v_mov_b32 v{va}, {addr}\nv_mov_b32 v{vt}, 1\nds_write_b32 v{va}, v{vt}')
    def lds_arrive(addr, vt, va, notlast):
        a(f'v_mov_b32 v{va}, {addr}\nv_mov_b32 v{vt}, 1\ns_mov_b64 exec, 1\ns_waitcnt lgkmcnt(0)\nds_add_rtn_u32 v{vt}, v{va}, v{vt}\ns_waitcnt lgkmcnt(0)\ns_mov_b64 exec, -1\nv_readfirstlane_b32 s95, v{vt}\ns_cmp_lg_u32 s95, 3\ns_cbranch_scc1 {notlast}')
    DPPS=['quad_perm:[1,0,3,2]','quad_perm:[2,3,0,1]','row_half_mirror','row_mirror']
    def red16(op, regs, n=4):
        for d in DPPS[:n]:
            if len(regs)<3: a('s_nop 1')
            for r in regs: a(f'{op}_dpp v{r}, v{r}, v{r} {d} row_mask:0xf bank_mask:0xf')
    def redrows(op, regs, tmps):
        for sw in ('v_permlane32_swap_b32','v_permlane16_swap_b32'):
            for r,t in zip(regs,tmps): a(f'v_mov_b32 v{t}, v{r}')
            a('s_nop 1')
            for r,t in zip(regs,tmps): a(f'{sw} v{r}, v{t}')
            a('s_nop 1')
            for r,t in zip(regs,tmps): a(f'{op} v{r}, v{r}, v{t}')
    def rbf(d,s):
        a(f'v_cvt_pk_bf16_f32 v{d}, v{s}, v{s}\nv_and_b32 v{d}, 0xffff0000, v{d}')

    a(f'{KN}:')
    a('s_cmp_ge_u32 s2, 256\ns_cbranch_scc1 L_end')
    if stamps: a('s_memrealtime s[100:101]')
    a('s_load_dwordx16 s[4:19], s[0:1], 0\ns_load_dwordx8 s[20:27], s[0:1], 64')
    a('v_lshrrev_b32 v1, 6, v0\nv_and_b32 v0, 63, v0')
    a('s_and_b32 s72, s2, 7\ns_lshr_b32 s73, s2, 3')
    a('v_readfirstlane_b32 s74, v1\ns_xor_b32 s74, s74, 4')
    if gmap==1:
        a('s_bcnt1_i32_b32 s75, s72\ns_and_b32 s75, s75, 1\ns_lshl_b32 s76, s73, 1\ns_or_b32 s75, s75, s76\ns_lshr_b32 s76, s72, 1')
    else:
        a('s_lshr_b32 s75, s2, 2\ns_and_b32 s76, s2, 3')
    a('s_lshl_b32 s77, s75, 22')
    a(f's_lshl_b32 s97, s2, 8\ns_lshl_b32 s78, s74, 5\ns_add_u32 s97, s97, s78\ns_add_u32 s97, s97, {WD_}')
    a('s_waitcnt lgkmcnt(0)')
    a('s_add_u32 s28, s6, s77\ns_addc_u32 s29, s7, 0\ns_mov_b32 s30, 0x400000\ns_mov_b32 s31, 0x20000')
    a('s_add_u32 s32, s8, s77\ns_addc_u32 s33, s9, 0\ns_mov_b32 s34, 0x400000\ns_mov_b32 s35, 0x20000')
    for base,p,n in ((36,4,7168),(40,10,448*8192),(44,12,4096*896),(48,16,448*3584),(52,18,448*3584),(56,20,1792*896),(60,22,7168),(64,24,256),(68,26,WS_BYTES)):
        a(f's_mov_b32 s{base}, s{p}\ns_mov_b32 s{base+1}, s{p+1}\ns_mov_b32 s{base+2}, {n}\ns_mov_b32 s{base+3}, 0x20000')
    a('v_lshrrev_b32 v4, 5, v0\nv_and_b32 v5, 31, v0')
    a('s_lshl_b32 s78, s75, 3\ns_add_u32 s78, s78, s76\nv_lshl_add_u32 v6, v4, 2, s78')
    a(f'v_lshlrev_b32 v2, 9, v6\nv_lshl_add_u32 v2, v5, 4, v2\nv_add_u32 v2, {WP_}, v2\nv_lshlrev_b32 v3, 3, v6\nv_add_u32 v3, {WS_}, v3')
    a('v_and_b32 v6, 15, v0\nv_lshrrev_b32 v7, 4, v0')
    a('s_cmp_ge_u32 s74, 4\ns_cbranch_scc1 L_side')

    O=64; F=128; Q=192; KV=8; VV=16; KA=20; VA=24; S0=32; P=40; M=44; LS=45; T=46; TK=60; TA=61; ONE=62
    for i in range(8): a(f'v_add_u32 v{T}, {2*i}, v4\nv_xor_b32 v{T}, v{T}, v5\nv_lshlrev_b32 v{T}, 4, v{T}\nv_lshl_add_u32 v{KV+i}, v4, 9, v{T}')
    for i in range(4): a(f'v_add_u32 v{T}, {2*i}, v4\nv_lshlrev_b32 v{T}, 1, v{T}\nv_xor_b32 v{T}, v{T}, v5\nv_lshlrev_b32 v{T}, 4, v{T}\nv_lshl_add_u32 v{VV+i}, v4, 9, v{T}')
    if 'noswz' in dbg:
        for i in range(12): a(f'v_lshlrev_b32 v{KV+i}, 4, v0')
    a('s_lshl_b32 s79, s74, 15')
    a('s_lshl_b32 s80, s76, 2\ns_add_u32 s80, s80, s74')
    li=I.bit_length()-1
    def stepbase():
        a(f's_lshr_b32 s81, s80, {li}\ns_mul_i32 s81, s81, {16384*I}\ns_and_b32 s82, s80, {I-1}\ns_mul_i32 s82, s82, {G}\ns_add_u32 s81, s81, s82')
    def dma(srd, voff, nv, ldsoff, lo=0, hi=16):
        for i in range(lo,hi):
            if i%GR==0 and N<32: a(f's_waitcnt vmcnt({N-GR})')
            if i%4==0:
                off=(i*1024//G)*(G*I)+(i*1024)%G
                a(f's_add_u32 s83, s81, {off}\ns_add_u32 m0, s79, {ldsoff+i*1024}\ns_nop 0')
            a(f'buffer_load_dwordx4 v{voff+(i%8)%nv}, {srd}, s83 offen offset:{(i%4)*1024} nt lds')
    stepbase()
    N0=min(16,N//4*4)
    dma(SK,KV,8,0,0,N0)
    a('s_barrier')
    for c in range(4): a(f'v_add_u32 v{T}, {4*c}, v7\nv_xor_b32 v{T}, v{T}, v6\nv_lshlrev_b32 v{T}, 4, v{T}\nv_lshl_add_u32 v{T}, v6, 9, v{T}\nv_add_u32 v{KA+c}, s79, v{T}')
    a(f'v_lshrrev_b32 v{T}, 2, v6\nv_lshl_add_u32 v{T}, v7, 2, v{T}')
    a(f'v_and_b32 v{T+1}, 7, v{T}\nv_and_b32 v{T+2}, 3, v0\nv_lshlrev_b32 v{T+2}, 3, v{T+2}\nv_lshl_add_u32 v{T+2}, v{T}, 9, v{T+2}\nv_add_u32 v{T+2}, s79, v{T+2}\nv_add_u32 v{T+2}, 16384, v{T+2}')
    for t in range(8): a(f'v_xor_b32 v{T}, {t}, v{T+1}\nv_lshl_add_u32 v{VA+t}, v{T}, 5, v{T+2}')
    for i in range(64): a(f'v_mov_b32 v{O+i}, 0')
    a(f'v_mov_b32 v{M}, 0xff7fffff\nv_mov_b32 v{LS}, 0\ns_mov_b32 s84, {C_SC}\nv_mov_b32 v{ONE}, 1')
    a(f's_lshl_b32 s85, s75, 8\ns_add_u32 s85, s85, {WT_}\nv_mov_b32 v{TA}, s85')
    a('s_mov_b32 s85, 0')
    stamp(0)
    if stamps: a(f'v_mov_b32 v250, s100\ns_mov_b64 exec, 1\nbuffer_store_dword v250, v251, {SWS}, 0 offen offset:12\ns_mov_b64 exec, -1')
    dma(SK,KV,8,0,N0,16); dma(SV,VV,4,16384)
    def step(last):
        tk = (S<16)
        a(f's_waitcnt vmcnt(16)')
        for sl in range(2):
            for kk in range(8): a(f'ds_read_b128 {vr(F+sl*32+kk*4,4)}, v{KA+kk%4} offset:{sl*8192+(kk>>2)*256}')
        if not last:
            stepbase()
            a('s_waitcnt lgkmcnt(0)')
            if tk:
                l=lab('nt')
                a(f's_add_u32 s86, s85, 2\ns_cmp_lt_u32 s86, {S}\ns_cbranch_scc1 {l}')
                l2=lab('ng')
                a(f's_cmp_lg_u32 s86, {S}\ns_cbranch_scc1 {l2}')
                lds_spin(F_GO,T,T+1)
                a(f'{l2}:\ns_mov_b64 exec, 1\nv_mov_b32 v{TK}, 1\nbuffer_atomic_add v{TK}, v{TA}, {SWS}, 0 offen sc0 sc1\ns_mov_b64 exec, -1\n{l}:')
            dma(SK,KV,8,0)
            l=lab('hq')
            a(f's_cmp_lg_u32 s85, 0\ns_cbranch_scc1 {l}')
            lds_spin(F_Q,T,T+1)
            a(f'v_and_b32 v{T}, 1, v0\nv_mul_u32_u24 v{T}, {QS}, v{T}\nv_lshl_add_u32 v{T}, v7, 4, v{T}\nv_add_u32 v{T}, {QL}, v{T}')
            for kk in range(8): a(f'ds_read_b128 {vr(Q+kk*4,4)}, v{T} offset:{kk*64}')
            a(f's_waitcnt lgkmcnt(0)\n{l}:')
        else:
            a('s_waitcnt lgkmcnt(0)')
        for kk in range(8):
            for sl in range(2):
                c='0' if kk==0 else vr(S0+sl*4,4)
                a(f'v_mfma_f32_16x16x32_bf16 {vr(S0+sl*4,4)}, {vr(F+sl*32+kk*4,4)}, {vr(Q+kk*4,4)}, {c}')
        a('s_nop 7')
        for i in range(4): a(f'v_cvt_pk_bf16_f32 v{P+i}, v{S0+2*i}, v{S0+2*i+1}')
        for i in range(4): a(f'v_lshlrev_b32 v{S0+2*i}, 16, v{P+i}\nv_and_b32 v{S0+2*i+1}, 0xffff0000, v{P+i}')
        a(f'v_max3_f32 v{T}, v{S0}, v{S0+1}, v{S0+2}\nv_max3_f32 v{T+1}, v{S0+3}, v{S0+4}, v{S0+5}\nv_max3_f32 v{T}, v{T}, v{S0+6}, v{S0+7}\nv_max_f32 v{T}, v{T}, v{T+1}')
        redrows('v_max_f32',[T],[T+1])
        a(f'v_mul_f32 v{T}, s84, v{T}\nv_max_f32 v{T}, v{T}, v{M}')
        a(f'v_sub_f32 v{T+1}, v{M}, v{T}\nv_cmp_neq_f32 vcc, v{M}, v{T}\nv_exp_f32 v{T+2}, v{T+1}\nv_mov_b32 v{M}, v{T}')
        for i in range(8): a(f'v_fma_f32 v{S0+i}, v{S0+i}, s84, -v{M}')
        for i in range(8): a(f'v_exp_f32 v{S0+i}, v{S0+i}')
        l=lab('nr')
        a(f's_cbranch_vccz {l}\nv_mov_b32 v{T+3}, v{T+2}\nv_mul_f32 v{LS}, v{LS}, v{T+2}')
        for i in range(32): a(f'v_pk_mul_f32 {vr(O+2*i,2)}, {vr(O+2*i,2)}, {vr(T+2,2)}')
        a(f'{l}:')
        a(f'v_add_f32 v{T}, v{S0}, v{S0+1}\nv_add_f32 v{T+1}, v{S0+2}, v{S0+3}\nv_add_f32 v{T+2}, v{S0+4}, v{S0+5}\nv_add_f32 v{T+3}, v{S0+6}, v{S0+7}')
        for i in range(4): a(f'v_cvt_pk_bf16_f32 v{P+i}, v{S0+2*i}, v{S0+2*i+1}')
        a(f'v_add_f32 v{T}, v{T}, v{T+1}\nv_add_f32 v{T+2}, v{T+2}, v{T+3}\nv_add_f32 v{LS}, v{LS}, v{T}\nv_add_f32 v{LS}, v{LS}, v{T+2}')
        if last:
            a('s_waitcnt vmcnt(8)')
            for t in range(16): a(f'ds_read_b64_tr_b16 {vr(F+t*4,2)}, v{VA+t%8} offset:{(t>>3)*256}')
            a('s_waitcnt vmcnt(0)')
            for t in range(16): a(f'ds_read_b64_tr_b16 {vr(F+t*4+2,2)}, v{VA+t%8} offset:{8192+(t>>3)*256}')
            for t in range(16):
                a(f's_waitcnt lgkmcnt({15-t})')
                a(f'v_mfma_f32_16x16x32_bf16 {vr(O+t*4,4)}, {vr(F+t*4,4)}, {vr(P,4)}, {vr(O+t*4,4)}')
        else:
            a('s_waitcnt vmcnt(16)')
            for t in range(16):
                for sl in range(2): a(f'ds_read_b64_tr_b16 {vr(F+t*4+sl*2,2)}, v{VA+t%8} offset:{sl*8192+(t>>3)*256}')
            a('s_waitcnt lgkmcnt(0)')
            dma(SV,VV,4,16384)
            for t in range(16): a(f'v_mfma_f32_16x16x32_bf16 {vr(O+t*4,4)}, {vr(F+t*4,4)}, {vr(P,4)}, {vr(O+t*4,4)}')
    a('s_add_u32 s80, s80, 16')
    a('L_loop:')
    step(False)
    a('s_add_u32 s85, s85, 1')
    if stamps:
        for k,n in ((4,1),(5,4),(6,8),(7,12)):
            l=lab('st'); a(f's_cmp_lg_u32 s85, {n}\ns_cbranch_scc1 {l}'); stamp(k); a(f'{l}:')
    if S<16:
        a(f's_add_u32 s86, s85, 1\ns_add_u32 s80, s80, 16\ns_cmp_lt_u32 s86, {S}\ns_cbranch_scc1 L_loop')
        a(f'v_readfirstlane_b32 s80, v{TK}\ns_add_u32 s80, s80, {S*16}\ns_cmp_lt_u32 s80, 256\ns_cbranch_scc1 L_loop')
    else:
        a('s_add_u32 s80, s80, 16\ns_cmp_lt_u32 s80, 256\ns_cbranch_scc1 L_loop')
    step(True)
    redrows('v_add_f32',[LS],[T])
    a(f'v_lshlrev_b32 v{T}, 10, v6\nv_lshl_add_u32 v{T}, v7, 4, v{T}\nv_add_u32 v{T}, s79, v{T}')
    a(f's_lshl_b32 s86, s74, 4\ns_add_u32 s86, s86, {MS}\nv_lshl_add_u32 v{T+1}, v0, 2, s86')
    a('s_mov_b32 exec_lo, 0x00030003\ns_mov_b32 exec_hi, 0x00030003')
    for t in range(16): a(f'ds_write_b128 v{T}, {vr(O+t*4,4)} offset:{t*64}')
    a(f's_mov_b64 exec, 3\nds_write2_b32 v{T+1}, v{M}, v{LS} offset0:0 offset1:2\ns_mov_b64 exec, -1')
    stamp(1)
    lds_arrive(F_MC,T+2,T+3,'L_end')
    a(f'v_lshlrev_b32 v{T}, 5, v0\nv_lshlrev_b32 v{T+1}, 2, v4\nv_add_u32 v{T+1}, {MS}, v{T+1}\nv_add_u32 v{T+2}, 0x10000, v{T}')
    for w in range(4): a(f'ds_read2_b32 {vr(S0+2*w,2)}, v{T+1} offset0:{w*4} offset1:{w*4+2}')
    for w in range(4):
        for h in range(2): a(f'ds_read_b128 {vr(F+w*8+h*4,4)}, v{T+2*(w>>1)} offset:{(w&1)*32768+h*16}')
    if S==16: lds_spin(F_GO,T+4,T+5)
    lds_set(F_MD,T+4,T+5)
    a(f's_waitcnt lgkmcnt(9)\nv_max3_f32 v{M}, v{S0}, v{S0+2}, v{S0+4}\nv_max_f32 v{M}, v{M}, v{S0+6}')
    for w in range(4): a(f'v_sub_f32 v{S0+2*w}, v{S0+2*w}, v{M}')
    for w in range(4): a(f'v_exp_f32 v{S0+2*w}, v{S0+2*w}')
    a(f's_nop 0\nv_mul_f32 v{LS}, v{S0}, v{S0+1}')
    for w in range(1,4): a(f'v_fmac_f32 v{LS}, v{S0+2*w}, v{S0+2*w+1}')
    a(f'v_rcp_f32 v{T}, v{LS}\ns_nop 0')
    for w in range(4): a(f'v_mul_f32 v{S0+2*w}, v{S0+2*w}, v{T}')
    a('s_waitcnt lgkmcnt(0)')
    for e in range(8): a(f'v_mul_f32 v{F+e}, v{F+e}, v{S0}')
    for w in range(1,4):
        for e in range(8): a(f'v_fmac_f32 v{F+e}, v{F+w*8+e}, v{S0+2*w}')
    for i in range(4): a(f'v_cvt_pk_bf16_f32 v{P+i}, v{F+2*i}, v{F+2*i+1}')
    for i in range(4): a(f'v_min_u32 v{P+i}, -2, v{P+i}')
    a(f'v_min_u32 v{M}, -2, v{M}\nv_min_u32 v{LS}, -2, v{LS}')
    a(f'buffer_store_dwordx4 {vr(P,4)}, v2, {SWS}, 0 offen sc1')
    a(f's_mov_b32 exec_lo, 1\ns_mov_b32 exec_hi, 1\nbuffer_store_dwordx2 {vr(M,2)}, v3, {SWS}, 0 offen sc1\ns_mov_b64 exec, -1')
    stamp(2)
    a('s_endpgm')

    a('L_side:'); TV[0]=58
    a(f's_sub_u32 s74, s74, 4\ns_setprio {prio}')
    X0=16; E=24; T=8
    a(f's_mul_i32 s78, s74, 1792\nv_lshlrev_b32 v{T}, 4, v0')
    for i in range(8): a(f'v_mov_b32 v{X0+i}, 0')
    a('s_mov_b32 exec_hi, 0x00ffffff')
    a(f'buffer_load_dwordx4 {vr(X0,4)}, v{T}, {SX}, s78 offen\nbuffer_load_dwordx4 {vr(X0+4,4)}, v{T}, {SX}, s78 offen offset:896')
    a('s_mov_b64 exec, -1')
    a(f'v_lshrrev_b32 v14, 1, v0\nv_and_b32 v15, 1, v0')
    a(f's_lshl_b32 s79, s72, 10\ns_lshl_b32 s80, s73, 5\ns_add_u32 s79, s79, s80')
    a(f'v_lshlrev_b32 v{T+1}, 13, v14\nv_lshl_add_u32 v{T+1}, v15, 4, v{T+1}\nv_add_u32 v{T+1}, s79, v{T+1}')
    a(f's_lshl_b32 s80, s74, 18\ns_lshl_b32 s81, s74, 10\ns_add_u32 s81, s81, {STG}')
    for i in range(0 if 'nowq' in dbg else 4):
        if i==3: a('s_cmp_ge_u32 s74, 2\ns_cbranch_scc1 L_wq3')
        a(f's_add_u32 m0, s81, {i*4096}\ns_add_u32 s82, s80, {i*4*262144}\nbuffer_load_dwordx4 v{T+1}, {SWQ}, s82 offen {wpol} lds')
    a('L_wq3:')
    a(f'v_mov_b32 v{T+2}, 0\nv_lshl_add_u32 v{T+3}, v6, 2, 0\nv_add_u32 v{T+3}, {FL}, v{T+3}\nds_write_b32 v{T+3}, v{T+2}\ns_waitcnt lgkmcnt(0)\ns_barrier')
    if 'noside' in dbg:
        lds_set(F_Q,16,17); lds_set(F_GO,16,17); a('s_endpgm')
    a(f's_load_dwordx2 s[4:5], s[26:27], {WE}')
    a(f'v_lshrrev_b32 v12, 2, v6\nv_lshl_add_u32 v12, v7, 3, v12\nv_lshlrev_b32 v12, 5, v12\nv_and_b32 v13, 3, v0\nv_lshl_add_u32 v12, v13, 3, v12\nv_add_u32 v12, {STG}, v12')
    a(f'v_and_b32 v13, 7, v0\nv_mul_u32_u24 v13, {XNS}, v13\nv_lshl_add_u32 v13, v7, 4, v13\nv_add_u32 v13, {XN}, v13')
    a('s_waitcnt vmcnt(3)')
    for r in range(2):
        for i in range(4): a(f'v_lshlrev_b32 v{E+r*8+2*i}, 16, v{X0+r*4+i}\nv_and_b32 v{E+r*8+2*i+1}, 0xffff0000, v{X0+r*4+i}')
    A=40
    for r in range(2):
        a(f'v_add_f32 v{A+r}, v{E+r*8}, v{E+r*8+1}')
        for i in range(2,8): a(f'v_add_f32 v{A+r}, v{A+r}, v{E+r*8+i}')
    red16('v_add_f32',[A,A+1]); redrows('v_add_f32',[A,A+1],[A+2,A+3])
    a('s_mov_b32 s83, 0x3b124925')
    for r in range(2): a(f'v_mul_f32 v{A+r}, s83, v{A+r}\nv_mov_b32 v{A+4+r}, 0')
    a('s_mov_b32 exec_hi, 0x00ffffff')
    for i in range(8):
        for r in range(2): a(f'v_sub_f32 v{A+2+r}, v{E+r*8+i}, v{A+r}')
        for r in range(2): a(f'v_fmac_f32 v{A+4+r}, v{A+2+r}, v{A+2+r}')
    a('s_mov_b64 exec, -1')
    red16('v_add_f32',[A+4,A+5]); redrows('v_add_f32',[A+4,A+5],[A+2,A+3])
    for r in range(2):
        a(f'v_mul_f32 v{A+4+r}, s83, v{A+4+r}'); rbf(A+4+r,A+4+r); a(f'v_add_f32 v{A+4+r}, 0x3727c5ac, v{A+4+r}'); rbf(A+4+r,A+4+r)
        a(f'v_sqrt_f32 v{A+4+r}, v{A+4+r}'); rbf(A+r,A+r); rbf(A+4+r,A+4+r); a(f'v_rcp_f32 v{A+4+r}, v{A+4+r}')
    for r in range(2):
        for i in range(8): a(f'v_sub_f32 v{E+r*8+i}, v{E+r*8+i}, v{A+r}')
        for i in range(4): a(f'v_cvt_pk_bf16_f32 v{X0+r*4+i}, v{E+r*8+2*i}, v{E+r*8+2*i+1}')
        for i in range(4): a(f'v_lshlrev_b32 v{E+r*8+2*i}, 16, v{X0+r*4+i}\nv_and_b32 v{E+r*8+2*i+1}, 0xffff0000, v{X0+r*4+i}')
        for i in range(8): a(f'v_mul_f32 v{E+r*8+i}, v{E+r*8+i}, v{A+4+r}')
        for i in range(4): a(f'v_cvt_pk_bf16_f32 v{X0+r*4+i}, v{E+r*8+2*i}, v{E+r*8+2*i+1}')
    a(f's_mul_i32 s78, s74, {2*XNS}\ns_add_u32 s78, s78, {XN}\nv_add_u32 v{T}, s78, v{T}')
    a(f's_mov_b32 exec_hi, 0x00ffffff\nds_write_b128 v{T}, {vr(X0,4)}\nds_write_b128 v{T}, {vr(X0+4,4)} offset:{XNS}\ns_mov_b64 exec, -1')
    a('s_waitcnt vmcnt(0) lgkmcnt(0)')
    stamp(0)
    lds_arrive(F_XC,16,17,'L_wait_go')
    XF=64; WF=128; D=16
    def proj():
        for kk in range(14):
            for h in range(2): a(f'ds_read_b64_tr_b16 {vr(WF+kk*4+h*2,2)}, v12 offset:{kk*1024+h*128}')
        a('s_waitcnt lgkmcnt(0)')
        for kk in range(14):
            c='0' if kk==0 else vr(D,4)
            a(f'v_mfma_f32_16x16x32_bf16 {vr(D,4)}, {vr(WF+kk*4,4)}, {vr(XF+kk*4,4)}, {c}')
        a('s_nop 7')
    for kk in range(14): a(f'ds_read_b128 {vr(XF+kk*4,4)}, v13 offset:{kk*64}')
    a('s_mul_i32 s4, s4, 0x9e3779b1\ns_add_u32 s4, s4, 0x7f4a7c15\ns_mul_i32 s5, s5, 0x85ebca6d\ns_add_u32 s5, s5, 0x165667b1')
    a(f's_lshl_b32 s80, s72, 11\ns_lshl_b32 s81, s73, 6\ns_add_u32 s80, s80, s81\ns_add_u32 s80, s80, {WQG}')
    a(f'v_lshlrev_b32 v{T}, 14, v6\nv_lshl_add_u32 v{T}, v7, 4, v{T}\nv_add_u32 v{T}, s80, v{T}\nv_mov_b32 v{D+5}, s4\nv_mov_b32 v{D+7}, s5')
    proj()
    a(f'v_cvt_pk_bf16_f32 v{D+4}, v{D}, v{D+1}\nv_cvt_pk_bf16_f32 v{D+6}, v{D+2}, v{D+3}')
    a(f's_mov_b32 exec_lo, 0x00ff00ff\ns_mov_b32 exec_hi, 0x00ff00ff\nbuffer_store_dwordx4 {vr(D+4,4)}, v{T}, {SWS}, 0 offen sc1\ns_mov_b64 exec, -1')
    stamp(1)
    def gpoll(load, cond, sleep, bound=1<<17):
        l=lab('gp'); d=lab('gd')
        a(f's_mov_b32 s96, 0\n{l}:'); a(load); a('s_waitcnt vmcnt(0)'); a(cond)
        a(f's_cbranch_vccz {d}')
        if sleep: a(f's_sleep {sleep}')
        a(f's_add_u32 s96, s96, 1\ns_cmp_lt_u32 s96, {bound}\ns_cbranch_scc1 {l}\n{d}:')
    def tagchk(regs, t):
        o=''
        for i,r in enumerate(regs): o+=f'v_xor_b32 v{r}, s{4+i%2}, v{r}\n'
        o+=f'v_or_b32 v{t}, v{regs[0]}, v{regs[1]}\n'
        for i in range(2,len(regs),2): o+=f'v_or3_b32 v{t}, v{t}, v{regs[i]}, v{regs[i+1]}\n'
        return o+f'v_cmp_ne_u32 vcc, 0, v{t}'
    a(f's_lshl_b32 s81, s75, 11\ns_add_u32 s81, s81, {WQG}\nv_lshl_add_u32 v{D+2}, v0, 4, s81')
    a(f'v_lshlrev_b32 v{D+3}, 3, v0\nv_add_u32 v{D+3}, {QL}, v{D+3}')
    gpoll(f'buffer_load_dwordx4 {vr(24,4)}, v{D+2}, {SWS}, 0 offen sc1\nbuffer_load_dwordx4 {vr(28,4)}, v{D+2}, {SWS}, 0 offen offset:1024 sc1', tagchk([25,27,29,31],D), psleep)
    stamp(2)
    a(f'ds_write2_b32 v{D+3}, v24, v26 offset0:0 offset1:1\nds_write2_b32 v{D+3}, v28, v30 offset0:{QS//4} offset1:{QS//4+1}\ns_waitcnt lgkmcnt(0)')
    lds_set(F_Q,D,D+1)
    stamp(3)
    if 'qonly' in dbg:
        lds_set(F_GO,16,17); lds_set(F_ST,16,17); a('s_endpgm')
    for i in range(4): a(f'v_mov_b32 v{D+4+i}, -1')
    a(f'buffer_store_dwordx4 {vr(D+4,4)}, v2, {SWS}, 0 offen sc1')
    a(f's_mov_b32 exec_lo, 1\ns_mov_b32 exec_hi, 1\nbuffer_store_dwordx2 {vr(D+4,2)}, v3, {SWS}, 0 offen sc1\ns_mov_b64 exec, -1')
    a(f's_cmp_lg_u32 s72, 7\ns_cbranch_scc1 L_c1\ns_lshl_b32 s80, s73, 9\ns_add_u32 s80, s80, {WG_}\nv_lshl_add_u32 v{D}, v5, 4, s80\nbuffer_store_dwordx4 {vr(D+4,4)}, v{D}, {SWS}, 0 offen sc1\nL_c1:')
    if S<16:
        a(f's_cmp_lg_u32 s76, 0\ns_cbranch_scc1 L_c2\ns_lshl_b32 s80, s75, 8\ns_add_u32 s80, s80, {WT_}\nv_mov_b32 v{D}, s80\nv_mov_b32 v{D+1}, 0\ns_mov_b64 exec, 1\nbuffer_store_dword v{D+1}, v{D}, {SWS}, 0 offen sc1\ns_mov_b64 exec, -1\nL_c2:')
    a('s_lshr_b32 s80, s73, 3\ns_lshl_b32 s80, s80, 3\ns_add_u32 s80, s80, s72\ns_cmp_ge_u32 s80, 28\ns_cbranch_scc1 L_noh')
    a('s_lshl_b32 s80, s80, 7\ns_and_b32 s81, s73, 7\ns_lshl_b32 s81, s81, 4\ns_add_u32 s80, s80, s81')
    a(f'v_mul_u32_u24 v{D}, 3584, v14\nv_add_u32 v{D}, s80, v{D}')
    for srd,msk in ((SWG,'0x55555555'),(SWU,'0xaaaaaaaa')):
        a(f's_mov_b32 exec_lo, {msk}\ns_mov_b32 exec_hi, {msk}')
        for kk in range(14): a(f's_mov_b32 m0, {STG+kk*1024}\ns_mov_b32 s82, {kk*32*3584}\nbuffer_load_dwordx4 v{D}, {srd}, s82 offen {hpol} lds')
    a('s_mov_b64 exec, -1')
    a(f'v_mul_u32_u24 v{T}, 3584, v6\nv_lshl_add_u32 v{T}, v7, 3, v{T}\nv_add_u32 v{T}, s80, v{T}\nv_add_u32 v{T}, {WH_}, v{T}')
    a('s_waitcnt vmcnt(0)')
    proj()
    for i in range(4): rbf(D+i,D+i)
    for i in range(4): a(f'v_mov_b32 v{D+4+i}, v{D+i}')
    a('s_nop 1')
    for i in range(4): a(f'v_permlane32_swap_b32 v{D+i}, v{D+4+i}')
    a('s_nop 1')
    for i in range(4): a(f'v_mul_f32 v{D+i}, v{D+i}, v{D+4+i}')
    a(f'v_cvt_pk_bf16_f32 v{D+4}, v{D}, v{D+1}\nv_cvt_pk_bf16_f32 v{D+5}, v{D+2}, v{D+3}')
    a(f's_mov_b32 exec_lo, 0x00ff00ff\ns_mov_b32 exec_hi, 0\nbuffer_store_dwordx2 {vr(D+4,2)}, v{T}, {SWS}, 0 offen sc1\ns_mov_b64 exec, -1')
    a('L_noh:')
    lds_set(F_ST,D,D+1)
    a(f's_lshl_b32 s80, s2, 3\ns_add_u32 s80, s80, {WF2}\nv_mov_b32 v{D}, s80\nv_mov_b32 v{D+2}, s4\nv_mov_b32 v{D+3}, s5')
    a(f's_mov_b64 exec, 1\ns_waitcnt vmcnt(0)\nbuffer_store_dwordx2 {vr(D+2,2)}, v{D}, {SWS}, 0 offen sc1\ns_mov_b64 exec, -1')
    a('s_mov_b32 s94, 1\ns_branch L_go')
    a('L_wait_go:')
    lds_spin(F_ST,D,D+1,sleep=8)
    a('s_mov_b32 s94, 0')
    def gocheck():
        l=lab('gc'); e=lab('ge'); nb=lab('nb')
        a(f's_cmp_eq_u32 s94, 0\ns_cbranch_scc1 {l}')
        a(f'v_lshlrev_b32 v{D+2}, 4, v0\nv_add_u32 v{D+2}, {WF2}, v{D+2}')
        gpoll(f'buffer_load_dwordx4 {vr(24,4)}, v{D+2}, {SWS}, 0 offen sc1\nbuffer_load_dwordx4 {vr(28,4)}, v{D+2}, {SWS}, 0 offen offset:1024 sc1', tagchk(list(range(24,32)),D), gsleep)
        lds_set(F_GO,D,D+1)
        a(f's_cmp_lg_u32 s2, 0\ns_cbranch_scc1 {nb}\nv_mov_b32 v{D}, {WE}\nv_mov_b32 v{D+2}, s4\nv_mov_b32 v{D+3}, s5\ns_mov_b64 exec, 1\nbuffer_store_dwordx2 {vr(D+2,2)}, v{D}, {SWS}, 0 offen sc1\ns_mov_b64 exec, -1\n{nb}:')
        stamp(4)
        a(f's_branch {e}\n{l}:')
        lds_spin(F_GO,D,D+1,sleep=8)
        a(f'{e}:')
    a('L_go:')
    if 'qonly' in dbg: a('s_endpgm')
    if 'nowo' in dbg:
        gocheck(); a('s_endpgm')
    a(f's_lshl_b32 s81, s74, 12\nv_add_u32 v12, s81, v12\ns_add_u32 s81, s81, {STG}')
    a(f'v_mul_u32_u24 v{T}, 896, v14\nv_lshl_add_u32 v{T}, v15, 4, v{T}')
    def wload(srd, n, dst):
        for i0 in range(0,n,4):
            for i in range(i0,min(n,i0+4)):
                a(f's_add_u32 m0, s81, {(i%4)*1024}\ns_add_u32 s83, s82, {i*32*896}\nbuffer_load_dwordx4 v{T}, {srd}, s83 offen {opol} lds')
            a('s_waitcnt vmcnt(0)')
            for i in range(i0,min(n,i0+4)):
                for h in range(2): a(f'ds_read_b64_tr_b16 {vr(dst+i*4+h*2,2)}, v12 offset:{(i%4)*1024+h*128}')
            a('s_waitcnt lgkmcnt(0)')
    a('s_cmp_eq_u32 s72, 7\ns_cbranch_scc1 L_dn')
    a('s_lshl_b32 s78, s72, 2\ns_and_b32 s79, s73, 3\ns_add_u32 s78, s78, s79\ns_lshr_b32 s79, s73, 2')
    a(f's_lshl_b32 s80, s78, 5\nv_add_u32 v{T}, s80, v{T}\ns_mul_i32 s82, s74, {1024*896}')
    wload(SWO,32,128)
    stamp(5)
    gocheck()
    XG=60
    a(f's_mul_i32 s83, s79, 896\ns_add_u32 s83, s83, s80\nv_lshl_add_u32 v{XG+2}, v6, 1, s83')
    a(f'buffer_load_ushort v{XG}, v{XG+2}, {SX}, 0 offen')
    a(f's_lshl_b32 s83, s78, 9\ns_lshl_b32 s84, s79, 6\ns_add_u32 s83, s83, s84\ns_add_u32 s83, s83, {WG_}\nv_lshl_add_u32 v{D}, v6, 2, s83')
    gpoll(f'buffer_load_dword v{XG+1}, v{D}, {SWS}, 0 offen sc1', f'v_cmp_eq_u32 vcc, -1, v{XG+1}', 32)
    a(f'v_lshlrev_b32 v{XG}, 16, v{XG}')
    stamp(6)
    a(f's_lshl_b32 s83, s79, 6\ns_lshl_b32 s84, s74, 4\ns_add_u32 s83, s83, s84\nv_add_u32 v{T}, s83, v6')
    a(f'v_lshlrev_b32 v{T+1}, 3, v{T}\nv_add_u32 v{T+1}, {WS_}, v{T+1}\nv_lshlrev_b32 v{T}, 9, v{T}\nv_lshl_add_u32 v{T}, v7, 4, v{T}\nv_add_u32 v{T}, {WP_}, v{T}')
    a(f's_lshl_b32 s83, s74, 6\ns_add_u32 s83, s83, {RED}\nv_lshl_add_u32 v{T+2}, v7, 4, s83\nv_lshlrev_b32 v{T+3}, 2, v6\nv_add_u32 v{T+3}, {RED}, v{T+3}')
    a(f'v_lshrrev_b32 v{D}, 2, v6')
    for u in range(1,4): a(f'v_cmp_eq_u32 s[{86+2*u}:{87+2*u}], {u}, v{D}')
    lds_spin(F_MD,D,D+1,sleep=2)
    ST=56; PB=64; DA=32
    gpoll(f'buffer_load_dwordx2 {vr(ST,2)}, v{T+1}, {SWS}, 0 offen sc1', f'v_max_u32 v{D}, v{ST}, v{ST+1}\nv_cmp_eq_u32 vcc, -1, v{D}', psleep)
    a('s_mov_b32 s96, 0\nL_pay:')
    for kk in range(8): a(f'buffer_load_dwordx4 {vr(PB+kk*4,4)}, v{T}, {SWS}, 0 offen offset:{kk*64} sc1')
    a(f'v_mov_b32 v{D}, v{ST}'); red16('v_max_f32',[D],2)
    a(f'v_sub_f32 v{D}, v{ST}, v{D}\nv_exp_f32 v{D}, v{D}\ns_nop 0\nv_mul_f32 v{D}, v{D}, v{ST+1}\nv_mov_b32 v{D+1}, v{D}'); red16('v_add_f32',[D+1],2)
    a(f'v_rcp_f32 v{D+1}, v{D+1}\nv_mov_b32 v{D+2}, 0\nv_mul_f32 v{D}, v{D}, v{D+1}')
    for kk in range(8):
        a(f's_waitcnt vmcnt({7-kk})')
        for u in range(4):
            c='0' if kk==0 else vr(DA+u*4,4)
            a(f'v_mfma_f32_16x16x32_bf16 {vr(DA+u*4,4)}, {vr(128+(u*8+kk)*4,4)}, {vr(PB+kk*4,4)}, {c}')
            if u<2: a(f'v_max3_u32 v{D+2}, v{D+2}, v{PB+kk*4+2*u}, v{PB+kk*4+2*u+1}')
    a(f'v_cmp_eq_u32 vcc, -1, v{D+2}\ns_cbranch_vccz L_ok\ns_nop 7\ns_add_u32 s96, s96, 1\ns_cmp_lt_u32 s96, 0x20000\ns_cbranch_scc1 L_pay\nL_ok:\ns_nop 5')
    for u in range(1,4):
        for i in range(4): a(f'v_cndmask_b32 v{DA+i}, v{DA+i}, v{DA+u*4+i}, s[{86+2*u}:{87+2*u}]')
    for i in range(4): a(f'v_mul_f32 v{DA+i}, v{DA+i}, v{D}')
    red16('v_add_f32',[DA,DA+1,DA+2,DA+3])
    a(f's_mov_b32 exec_lo, 0x00010001\ns_mov_b32 exec_hi, 0x00010001\nds_write_b128 v{T+2}, {vr(DA,4)}\ns_mov_b64 exec, -1')
    lds_arrive(F_FC,D,D+1,'L_end')
    a(f'ds_read2_b32 {vr(DA,2)}, v{T+3} offset0:0 offset1:16\nds_read2_b32 {vr(DA+2,2)}, v{T+3} offset0:32 offset1:48\ns_waitcnt lgkmcnt(0)')
    a(f'v_add_f32 v{DA}, v{DA}, v{DA+1}\nv_add_f32 v{DA+2}, v{DA+2}, v{DA+3}\nv_add_f32 v{DA}, v{DA}, v{DA+2}'); rbf(DA,DA)
    a(f'v_mul_f32 v{DA}, v{DA}, v{XG+1}'); rbf(DA,DA)
    a(f'v_add_f32 v{DA}, v{DA}, v{XG}\nv_cvt_pk_bf16_f32 v{DA}, v{DA}, v{DA}')
    a(f's_mov_b64 exec, 0xffff\nbuffer_store_short v{DA}, v{XG+2}, {SOUT}, 0 offen\ns_mov_b64 exec, -1')
    stamp(7)
    a('s_endpgm')
    a('L_dn:')
    gocheck()
    a('s_cmp_ge_u32 s73, 28\ns_cbranch_scc1 L_end')
    a(f's_lshl_b32 s80, s73, 5\nv_add_u32 v{T}, s80, v{T}\ns_mul_i32 s82, s74, {14*32*896}')
    a(f'v_and_b32 v{D}, 7, v0\nv_mul_u32_u24 v{D}, 3584, v{D}\nv_lshl_add_u32 v{D}, v7, 4, v{D}\ns_mul_i32 s83, s74, 896\ns_add_u32 s83, s83, {WH_}\nv_add_u32 v{D}, s83, v{D}')
    for i in range(14): a(f'buffer_load_dwordx4 {vr(64+i*4,4)}, v{D}, {SWS}, 0 offen offset:{i*64} sc1')
    wload(SWD,14,128)
    for i in range(14):
        c='0' if i==0 else vr(DA,4)
        a(f'v_mfma_f32_16x16x32_bf16 {vr(DA,4)}, {vr(128+i*4,4)}, {vr(64+i*4,4)}, {c}')
    a(f's_lshl_b32 s83, s74, 9\ns_add_u32 s83, s83, {RED}\nv_lshlrev_b32 v{D}, 6, v6\nv_lshl_add_u32 v{D}, v7, 4, v{D}\nv_add_u32 v{D}, s83, v{D}\ns_nop 7')
    a(f's_mov_b32 exec_lo, 0x00ff00ff\ns_mov_b32 exec_hi, 0x00ff00ff\nds_write_b128 v{D}, {vr(DA,4)}\ns_mov_b64 exec, -1')
    lds_arrive(F_FC,D,D+1,'L_end')
    a(f'v_lshlrev_b32 v{D}, 4, v5\nv_add_u32 v{D+1}, {RED}, v{D}')
    for w in range(4): a(f'ds_read_b128 {vr(DA+w*4,4)}, v{D+1} offset:{w*512}')
    a(f's_lshl_b32 s80, s73, 9\ns_add_u32 s80, s80, {WG_}\nv_add_u32 v{D}, s80, v{D}\ns_mov_b32 s83, 0xbfb8aa3b\ns_waitcnt lgkmcnt(0)')
    for i in range(4):
        a(f'v_add_f32 v{DA+i}, v{DA+i}, v{DA+4+i}\nv_add_f32 v{DA+8+i}, v{DA+8+i}, v{DA+12+i}\nv_add_f32 v{DA+i}, v{DA+i}, v{DA+8+i}'); rbf(DA+i,DA+i)
        a(f'v_mul_f32 v{DA+4}, s83, v{DA+i}\nv_exp_f32 v{DA+4}, v{DA+4}\ns_nop 0\nv_add_f32 v{DA+4}, 1.0, v{DA+4}\nv_rcp_f32 v{DA+4}, v{DA+4}\ns_nop 0\nv_mul_f32 v{DA+i}, v{DA+i}, v{DA+4}'); rbf(DA+i,DA+i)
    a(f's_mov_b32 exec_hi, 0\nbuffer_store_dwordx4 {vr(DA,4)}, v{D}, {SWS}, 0 offen sc1\ns_mov_b64 exec, -1')
    stamp(7)
    a('L_end:\ns_endpgm')
    head=HDR+f'; @launch grid=(256,1,1) block=(512,1,1) lds={LDS}\n.amdgcn_target "amdgcn-amd-amdhsa--gfx950"\n.text\n.globl {KN}\n.p2align 8\n.type {KN},@function\n'
    tail=f'.section .rodata,"a"\n.p2align 6\n.amdhsa_kernel {KN}\n  .amdhsa_next_free_vgpr 256\n  .amdhsa_next_free_sgpr 102\n  .amdhsa_accum_offset 256\n  .amdhsa_group_segment_fixed_size 0\n  .amdhsa_kernarg_size 96\n  .amdhsa_user_sgpr_count 2\n  .amdhsa_user_sgpr_kernarg_segment_ptr 1\n  .amdhsa_system_sgpr_workgroup_id_x 1\n.end_amdhsa_kernel\n'
    return head+'\n'.join(L)+'\n'+tail
if __name__=='__main__':
    from build import build
    cfgs=eval(sys.argv[1]); specs=[]
    for name,kw in cfgs.items():
        open(name+'.s','w').write(gen(**kw)); specs.append('work/'+build(name+'.s'))
    opts=sys.argv[2] if len(sys.argv)>2 else '-r 15'
    open('run.sh','w').write(f'timeout 200 ./work/bench {opts} '+' '.join(specs)+'\n')
    print(' '.join('"'+s.split(':')[0]+'",' for s in specs))
```
